```python
import torch

def _softmax(x, axis=-1):
    return torch.softmax(x, dim=axis)

def _gelu(x):
    return torch.nn.functional.gelu(x, approximate='tanh')

def _silu(x):
    return torch.nn.functional.silu(x)

def _sigmoid(x):
    return torch.sigmoid(x)

def _layernorm(x, axis=-1, eps=1e-05):
    m = x.mean(dim=axis, keepdim=True)
    v = x.var(dim=axis, keepdim=True, unbiased=False)
    return (x - m) / torch.sqrt(v + eps)

def _scatter_add(tgt, idx, src, axis=0):
    return tgt.clone().index_add_(axis, idx, src)

def _segment_sum(src, seg, n):
    out = torch.zeros((n,) + src.shape[1:], dtype=src.dtype)
    return out.index_add_(0, seg, src)

def _pad(x, pw):
    flat = tuple((v for pair in reversed(pw) for v in pair))
    return torch.nn.functional.pad(x, flat)
kernel_name = 'standalone__tree_speculative_verify_tree_attention_over_candidate_token_tree__decode'

def setup_inputs():

    _w = lambda a: (lambda t: t.to(torch.bfloat16) if t.is_floating_point() else t)(torch.as_tensor(a))
    B, Hq, Hkv, T, C, D = (1, 16, 8, 1, 16384, 256)
    tree_mask = torch.zeros((B, T, T), dtype=float)
    for b in range(B):
        parent = torch.zeros(T, dtype=torch.int64)
        for i in range(1, T):
            parent[i] = int(torch.randint(0, i, (1,)).item())
        for i in range(T):
            j = i
            tree_mask[b, i, j] = 1.0
            while j > 0:
                j = parent[j]
                tree_mask[b, i, j] = 1.0
    return {'q': _w((lambda *s: torch.randn(*s, dtype=torch.bfloat16) * 0.8)(B, Hq, T, D)), 'k_cache': _w((lambda *s: torch.randn(*s, dtype=torch.bfloat16) * 0.8)(B, Hkv, C, D)), 'v_cache': _w((lambda *s: torch.randn(*s, dtype=torch.bfloat16) * 0.05)(B, Hkv, C, D)), 'k_tree': _w((lambda *s: torch.randn(*s, dtype=torch.bfloat16) * 0.8)(B, Hkv, T, D)), 'v_tree': _w((lambda *s: torch.randn(*s, dtype=torch.bfloat16) * 0.05)(B, Hkv, T, D)), 'tree_mask': _w(tree_mask)}

def reference(q, k_cache, v_cache, k_tree, v_tree, tree_mask):
    B, Hq, T, D = q.shape
    Hkv, C = (k_cache.shape[1], k_cache.shape[2])
    rep = Hq // Hkv
    kc = (lambda x, n, axis: torch.repeat_interleave(x, n, dim=axis))(k_cache, rep, axis=1)
    vc = (lambda x, n, axis: torch.repeat_interleave(x, n, dim=axis))(v_cache, rep, axis=1)
    kt = (lambda x, n, axis: torch.repeat_interleave(x, n, dim=axis))(k_tree, rep, axis=1)
    vt = (lambda x, n, axis: torch.repeat_interleave(x, n, dim=axis))(v_tree, rep, axis=1)
    k = torch.concatenate([kc, kt], axis=2)
    v = torch.concatenate([vc, vt], axis=2)
    scale = D ** (-0.5)
    scores = torch.einsum('bhqd,bhkd->bhqk', q, k) * scale
    ctx_mask = torch.ones((B, 1, T, C), dtype=scores.dtype)
    tm = tree_mask[:, None, :, :].clone()
    full_mask = torch.concatenate([ctx_mask, tm], axis=-1)
    scores = scores + (1.0 - full_mask) * -1000000000.0
    p = _softmax(scores, axis=-1)
    return torch.einsum('bhqk,bhkd->bhqd', p, v)
```

```python
import sys, math

KN = "standalone__tree_speculative_verify_tree_attention_over_candidate_token_tree__decode_kernel"

HEADER = """; Kernarg layout for this problem (72 bytes, ptrs only, base s[0:1]):
"""


def f2u(x):
    import struct
    return struct.unpack("<I", struct.pack("<f", x))[0]


class G:
    def __init__(self):
        self.L = []
        self.vm = []

    def e(self, s):
        self.L.append("    " + s)

    def lab(self, s):
        self.L.append(s + ":")

    def c(self, s):
        self.L.append("    ; " + s)

    def vmem(self, s, tag):
        self.e(s)
        self.vm.append(tag)

    def wait_vm(self, tag):
        idx = max(i for i, t in enumerate(self.vm) if t == tag)
        n = len(self.vm) - 1 - idx
        assert n <= 63, n
        self.e("s_waitcnt vmcnt(%d)" % n)
        self.vm = self.vm[idx + 1:]

    def wait_vm_all(self):
        self.e("s_waitcnt vmcnt(0)")
        self.vm = []


def gen(opt):
    NT = " nt" if opt.get("nt", 1) else ""
    if opt.get("pol"):
        NT = " " + opt["pol"]
    RING = opt.get("ring", 10)
    assert RING % 2 == 0
    WREG = RING * 4096
    LDS = 4 * WREG
    g = G()
    e = g.e
    VTID, VLANE, VG = 0, 1, 2
    VO = 4
    KA = 8
    VA = 12
    T = 20
    ST = 32
    QF = 32
    KF = 64
    S = 96
    PA = 128
    ACC = 192
    VMX, VL, VPT = 208, 209, 210
    VT0 = 212
    VST = 216
    NV = 224

    sQ, sKC, sVC, sKT, sVT, sMK, sOUT, sDBG, sWS = 4, 6, 8, 10, 12, 14, 16, 18, 20
    sHEAD, sSPLIT, sWAVE, sLB = 22, 23, 24, 25
    srdK, srdV, srdQ, srdKT, srdVT, srdMK, srdWS, srdOUT, srdDBG = 28, 32, 36, 40, 44, 48, 52, 56, 60
    sOFF = 64
    sT = 65
    sM = 66
    sDES = 74
    sC = 75
    sT2 = 76
    sT3 = 77

    def srd(base, ptr, off_s, size):
        if off_s is None:
            e("s_mov_b32 s%d, s%d" % (base, ptr))
            e("s_mov_b32 s%d, s%d" % (base + 1, ptr + 1))
        else:
            e("s_add_u32 s%d, s%d, s%d" % (base, ptr, off_s))
            e("s_addc_u32 s%d, s%d, 0" % (base + 1, ptr + 1))
        e("s_mov_b32 s%d, 0x%x" % (base + 2, size))
        e("s_mov_b32 s%d, 0x20000" % (base + 3))

    e("s_cmp_ge_u32 s2, 256")
    e("s_cbranch_scc1 L_end")
    e("s_load_dwordx16 s[4:19], s[0:1], 0")
    e("s_load_dwordx2 s[20:21], s[0:1], 64")
    e("v_lshrrev_b32 v3, 6, v0")
    e("v_and_b32 v%d, 63, v0" % VLANE)
    e("v_readfirstlane_b32 s%d, v3" % sWAVE)
    e("v_lshrrev_b32 v%d, 4, v%d" % (VG, VLANE))
    e("s_and_b32 s%d, s2, 7" % sHEAD)
    e("s_lshr_b32 s%d, s2, 3" % sSPLIT)
    e("v_lshrrev_b32 v%d, 5, v%d" % (T, VLANE))
    e("v_and_b32 v%d, 31, v%d" % (T + 1, VLANE))
    e("v_lshlrev_b32 v%d, 1, v%d" % (T + 2, T))
    e("v_xor_b32 v%d, v%d, v%d" % (T + 1, T + 1, T + 2))
    e("v_lshlrev_b32 v%d, 9, v%d" % (T + 3, T))
    for i in range(4):
        e("v_xor_b32 v%d, %d, v%d" % (T + 4, 4 * i, T + 1))
        e("v_lshl_add_u32 v%d, v%d, 4, v%d" % (VO + i, T + 4, T + 3))
    e("s_mul_i32 s%d, s%d, %d" % (sLB, sWAVE, WREG))
    e("s_lshl_b32 s%d, s%d, 23" % (sT, sHEAD))
    e("s_lshl_b32 s%d, s%d, 18" % (sT2, sSPLIT))
    e("s_add_u32 s%d, s%d, s%d" % (sT, sT, sT2))
    e("s_lshl_b32 s%d, s%d, 16" % (sT2, sWAVE))
    e("s_add_u32 s%d, s%d, s%d" % (sT, sT, sT2))
    e("s_lshl_b32 s%d, s%d, 10" % (sT2, sHEAD))
    e("s_lshl_b32 s%d, s%d, 9" % (sT3, sHEAD))
    e("s_or_b32 s%d, s%d, s%d" % (sDES, sSPLIT, sWAVE))
    e("v_lshlrev_b32 v%d, 4, v%d" % (T + 5, VLANE))
    e("s_waitcnt lgkmcnt(0)")
    srd(srdK, sKC, sT, 65536)
    srd(srdQ, sQ, sT2, 1024)
    AUX = (RING - 1) * 4096
    e("s_cmp_lg_u32 s%d, 0" % sDES)
    e("s_cbranch_scc1 L_notree0")
    srd(srdKT, sKT, sT3, 512)
    srd(srdVT, sVT, sT3, 512)
    srd(srdMK, sMK, None, 2)
    e("s_add_u32 m0, s%d, %d" % (sLB, AUX + 1024))
    e("s_nop 0")
    e("buffer_load_dwordx4 v%d, s[%d:%d], 0 offen lds" % (T + 5, srdKT, srdKT + 3))
    e("s_add_u32 m0, s%d, %d" % (sLB, AUX + 2048))
    e("s_nop 0")
    e("buffer_load_dwordx4 v%d, s[%d:%d], 0 offen lds" % (T + 5, srdVT, srdVT + 3))
    e("buffer_load_ushort v%d, off, s[%d:%d], 0" % (T + 6, srdMK, srdMK + 3))
    g.lab("L_notree0")
    e("s_add_u32 m0, s%d, %d" % (sLB, AUX))
    e("s_nop 0")
    g.vmem("buffer_load_dwordx4 v%d, s[%d:%d], 0 offen lds" % (T + 5, srdQ, srdQ + 3), "aux")

    def issue_block(n):
        r = srdK if n < 16 else srdV
        off = (n % 16) * 4096
        slot = n % RING
        e("s_add_u32 m0, s%d, %d" % (sLB, slot * 4096))
        e("s_mov_b32 s%d, %d" % (sOFF, off))
        for i in range(4):
            o = (" offset:%d" % (i * 1024)) if i else ""
            g.vmem("buffer_load_dwordx4 v%d, s[%d:%d], s%d offen%s%s lds" % (VO + i, r, r + 3, sOFF, o, NT), "b%d" % n)

    issue_block(0)
    srd(srdV, sVC, sT, 65536)
    for n in range(1, RING - 1):
        issue_block(n)
    nxt = RING - 1

    e("v_and_b32 v%d, 15, v%d" % (T, VLANE))
    e("v_and_b32 v%d, 7, v%d" % (T + 1, VLANE))
    e("v_lshlrev_b32 v%d, 1, v%d" % (T + 1, T + 1))
    e("v_xor_b32 v%d, v%d, v%d" % (T + 1, T + 1, VG))
    e("v_lshlrev_b32 v%d, 9, v%d" % (T + 2, T))
    e("v_add_u32 v%d, s%d, v%d" % (T + 2, sLB, T + 2))
    for sl in range(4):
        e("v_xor_b32 v%d, %d, v%d" % (T + 3, 4 * sl, T + 1))
        e("v_lshl_add_u32 v%d, v%d, 4, v%d" % (KA + sl, T + 3, T + 2))
    e("v_bfe_u32 v%d, v%d, 2, 2" % (T, VLANE))
    e("v_lshl_add_u32 v%d, v%d, 2, v%d" % (T, VG, T))
    e("v_and_b32 v%d, 7, v%d" % (T + 1, T))
    e("v_and_b32 v%d, 3, v%d" % (T + 2, VLANE))
    e("v_lshlrev_b32 v%d, 3, v%d" % (T + 2, T + 2))
    e("v_lshl_add_u32 v%d, v%d, 9, v%d" % (T + 2, T, T + 2))
    e("v_add_u32 v%d, s%d, v%d" % (T + 2, sLB, T + 2))
    for tau in range(8):
        e("v_xor_b32 v%d, %d, v%d" % (T + 3, tau, T + 1))
        e("v_lshl_add_u32 v%d, v%d, 5, v%d" % (VA + tau, T + 3, T + 2))
    e("v_and_b32 v%d, 1, v%d" % (T, VLANE))
    e("v_lshlrev_b32 v%d, 9, v%d" % (T, T))
    e("v_lshl_add_u32 v%d, v%d, 4, v%d" % (T, VG, T))
    e("v_add_u32 v%d, s%d, v%d" % (T + 7, sLB, T))
    for i in range(64):
        e("v_mov_b32 v%d, 0" % (PA + i))
    for i in range(16):
        e("v_mov_b32 v%d, 0" % (ACC + i))
    for u in range(4):
        m = 0x000F000F000F000F << (4 * u)
        e("s_mov_b32 s%d, 0x%x" % (sM + 2 * u, m & 0xFFFFFFFF))
        e("s_mov_b32 s%d, 0x%x" % (sM + 2 * u + 1, m >> 32))
    c = math.log2(math.e) / 16.0
    e("s_mov_b32 s%d, 0x%x" % (sC, f2u(c)))
    e("v_mov_b32 v%d, 0x%x" % (VST, f2u(-3.0e38)))

    g.wait_vm("aux")
    for s in range(8):
        e("ds_read_b128 v[%d:%d], v%d offset:%d" % (QF + 4 * s, QF + 4 * s + 3, T + 7, AUX + 64 * s))
    e("s_cmp_lg_u32 s%d, 0" % sDES)
    e("s_cbranch_scc1 L_notree1")
    e("v_lshlrev_b32 v%d, 4, v%d" % (T, VG))
    e("v_add_u32 v%d, s%d, v%d" % (T, sLB, T))
    for s in range(8):
        e("ds_read_b128 v[%d:%d], v%d offset:%d" % (KF + 4 * s, KF + 4 * s + 3, T, AUX + 1024 + 64 * s))
    e("v_lshlrev_b32 v%d, 1, v%d" % (T + 1, VLANE))
    e("v_add_u32 v%d, s%d, v%d" % (T + 1, sLB, T + 1))
    for q in range(4):
        e("ds_read_u16 v%d, v%d offset:%d" % (VT0 + q, T + 1, AUX + 2048 + 128 * q))
    e("s_waitcnt lgkmcnt(0)")
    for s in range(8):
        e("v_mfma_f32_16x16x32_bf16 v[%d:%d], v[%d:%d], v[%d:%d], %s" % (
            S, S + 3, KF + 4 * s, KF + 4 * s + 3, QF + 4 * s, QF + 4 * s + 3, "0" if s == 0 else "v[%d:%d]" % (S, S + 3)))
    for q in range(4):
        e("v_lshlrev_b32 v%d, 16, v%d" % (VT0 + q, VT0 + q))
    e("v_lshlrev_b32 v%d, 16, v%d" % (T + 6, T + 6))
    e("v_sub_f32 v%d, 1.0, v%d" % (T + 6, T + 6))
    e("v_mul_f32 v%d, 0x%x, v%d" % (T + 6, f2u(-1.6e10), T + 6))
    e("s_nop 2")
    e("v_add_f32 v%d, v%d, v%d" % (VST, S, T + 6))
    g.lab("L_notree1")
    e("s_waitcnt lgkmcnt(0)")
    issue_block(nxt); nxt += 1

    for tau in range(8):
        b0 = 2 * tau
        g.wait_vm("b%d" % (b0 + 1))
        base = (b0 % RING) * 4096
        for s in range(8):
            e("ds_read_b128 v[%d:%d], v%d offset:%d" % (KF + 4 * s, KF + 4 * s + 3, KA + (s & 3), base + 256 * (s >> 2)))
        e("s_waitcnt lgkmcnt(0)")
        for k in range(2):
            if nxt < 32:
                issue_block(nxt); nxt += 1
        for s in range(8):
            e("v_mfma_f32_16x16x32_bf16 v[%d:%d], v[%d:%d], v[%d:%d], %s" % (
                S + 4 * tau, S + 4 * tau + 3, KF + 4 * s, KF + 4 * s + 3, QF + 4 * s, QF + 4 * s + 3,
                "0" if s == 0 else "v[%d:%d]" % (S + 4 * tau, S + 4 * tau + 3)))
    e("s_nop 7")
    e("v_max3_f32 v%d, v%d, v%d, v%d" % (VMX, S, S + 1, VST))
    for i in range(2, 32, 2):
        e("v_max3_f32 v%d, v%d, v%d, v%d" % (VMX, S + i, S + i + 1, VMX))

    def xrow(op, v):
        e("v_mov_b32 v%d, v%d" % (T, v))
        e("s_nop 1")
        e("v_permlane16_swap_b32 v%d, v%d" % (T, v))
        e("s_nop 1")
        e("%s v%d, v%d, v%d" % (op, v, v, T))
        e("v_mov_b32 v%d, v%d" % (T, v))
        e("s_nop 1")
        e("v_permlane32_swap_b32 v%d, v%d" % (T, v))
        e("s_nop 1")
        e("%s v%d, v%d, v%d" % (op, v, v, T))

    xrow("v_max_f32", VMX)
    e("v_mul_f32 v%d, s%d, v%d" % (VMX, sC, VMX))
    for i in range(32):
        e("v_fma_f32 v%d, v%d, s%d, -v%d" % (S + i, S + i, sC, VMX))
    e("v_fma_f32 v%d, v%d, s%d, -v%d" % (VPT, VST, sC, VMX))
    for i in range(32):
        e("v_exp_f32 v%d, v%d" % (S + i, S + i))
    e("v_exp_f32 v%d, v%d" % (VPT, VPT))
    e("v_add_f32 v%d, v%d, v%d" % (VL, S, S + 1))
    for i in range(2, 32):
        e("v_add_f32 v%d, v%d, v%d" % (VL, VL, S + i))
    xrow("v_add_f32", VL)
    e("v_add_f32 v%d, v%d, v%d" % (VL, VL, VPT))
    for u in range(4):
        e("s_mov_b64 exec, s[%d:%d]" % (sM + 2 * u, sM + 2 * u + 1))
        for gam in range(4):
            for k in range(4):
                src = S + 8 * gam + 2 * k
                e("v_cvt_pk_bf16_f32 v%d, v%d, v%d" % (PA + 16 * u + 4 * gam + k, src, src + 1))
    e("s_mov_b64 exec, -1")
    e("s_cmp_lg_u32 s%d, 0" % sDES)
    e("s_cbranch_scc1 L_notree2")
    e("v_mov_b32_dpp v%d, v%d quad_perm:[0,0,2,2] row_mask:0xf bank_mask:0xf" % (T, VPT))
    e("v_mov_b32_dpp v%d, v%d quad_perm:[1,1,3,3] row_mask:0xf bank_mask:0xf" % (T + 1, VPT))
    for q in range(4):
        e("v_mul_f32 v%d, v%d, v%d" % (ACC + 4 * q, T, VT0 + q))
        e("v_mul_f32 v%d, v%d, v%d" % (ACC + 4 * q + 1, T + 1, VT0 + q))
    g.lab("L_notree2")

    def vread(t, half, base):
        r = ST + 4 * t + 2 * half
        e("ds_read_b64_tr_b16 v[%d:%d], v%d offset:%d" % (r, r + 1, VA + (t & 7), base + 256 * (t >> 3)))

    def pvm(gam, t):
        q, u = t >> 2, t & 3
        a = PA + 16 * u + 4 * gam
        b = ST + 4 * t
        e("v_mfma_f32_16x16x32_bf16 v[%d:%d], v[%d:%d], v[%d:%d], v[%d:%d]" % (
            ACC + 4 * q, ACC + 4 * q + 3, a, a + 3, b, b + 3, ACC + 4 * q, ACC + 4 * q + 3))

    for gam in range(4):
        b0 = 16 + 4 * gam
        g.wait_vm("b%d" % (b0 + 1))
        base0 = (b0 % RING) * 4096
        base1 = ((b0 + 2) % RING) * 4096
        for t in range(16):
            vread(t, 0, base0)
        g.wait_vm("b%d" % (b0 + 3))
        if gam < 3:
            e("s_waitcnt lgkmcnt(0)")
            for k in range(2):
                if nxt < 32:
                    issue_block(nxt); nxt += 1
            for t in range(16):
                vread(t, 1, base1)
            e("s_waitcnt lgkmcnt(0)")
            for k in range(2):
                if nxt < 32:
                    issue_block(nxt); nxt += 1
            for t in range(16):
                pvm(gam, t)
        else:
            D = 6
            e("s_waitcnt lgkmcnt(0)")
            for t in range(D):
                vread(t, 1, base1)
            for t in range(16):
                if t + D < 16:
                    vread(t + D, 1, base1)
                e("s_waitcnt lgkmcnt(%d)" % min(D, 15 - t))
                pvm(gam, t)
    assert nxt == 32
    assert not g.vm, g.vm

    e("v_lshlrev_b32 v%d, 3, v%d" % (T, VLANE))
    e("v_add_u32 v%d, s%d, v%d" % (T, sLB, T))
    e("v_mov_b32 v%d, v%d" % (T + 2, VMX))
    e("v_mov_b32 v%d, v%d" % (T + 3, VL))
    e("s_nop 4")
    for q in range(4):
        e("ds_write_b64 v%d, v[%d:%d] offset:%d" % (T, ACC + 4 * q, ACC + 4 * q + 1, 512 * q))
    e("s_mov_b64 exec, 3")
    e("ds_write_b64 v%d, v[%d:%d] offset:2048" % (T, T + 2, T + 3))
    e("s_mov_b64 exec, -1")
    e("s_waitcnt lgkmcnt(0)")
    e("s_barrier")
    e("s_lshl_b32 s%d, s%d, 9" % (sT, sWAVE))
    e("v_lshlrev_b32 v%d, 3, v%d" % (T, VLANE))
    e("v_add_u32 v%d, s%d, v%d" % (T, sT, T))
    e("v_mov_b32 v%d, 0" % (T + 1))
    W = ST
    ML = ST + 8
    for w in range(4):
        off = w * WREG
        if off + 2048 + 16 <= 65535:
            e("ds_read_b64 v[%d:%d], v%d offset:%d" % (W + 2 * w, W + 2 * w + 1, T, off))
            e("ds_read_b128 v[%d:%d], v%d offset:%d" % (ML + 4 * w, ML + 4 * w + 3, T + 1, off + 2048))
        else:
            e("v_add_u32 v%d, 0x%x, v%d" % (T + 2, off, T))
            e("v_mov_b32 v%d, 0x%x" % (T + 3, off))
            e("ds_read_b64 v[%d:%d], v%d" % (W + 2 * w, W + 2 * w + 1, T + 2))
            e("ds_read_b128 v[%d:%d], v%d offset:2048" % (ML + 4 * w, ML + 4 * w + 3, T + 3))
    srd(srdWS, sWS, None, 1 << 20)
    e("s_waitcnt lgkmcnt(0)")
    M0_, M1_ = T + 4, T + 5
    e("v_max3_f32 v%d, v%d, v%d, v%d" % (M0_, ML, ML + 4, ML + 8))
    e("v_max3_f32 v%d, v%d, v%d, v%d" % (M1_, ML + 2, ML + 6, ML + 10))
    e("v_max_f32 v%d, v%d, v%d" % (M0_, M0_, ML + 12))
    e("v_max_f32 v%d, v%d, v%d" % (M1_, M1_, ML + 14))
    for w in range(4):
        e("v_sub_f32 v%d, v%d, v%d" % (ML + 4 * w, ML + 4 * w, M0_))
        e("v_sub_f32 v%d, v%d, v%d" % (ML + 4 * w + 2, ML + 4 * w + 2, M1_))
    for w in range(4):
        e("v_exp_f32 v%d, v%d" % (ML + 4 * w, ML + 4 * w))
        e("v_exp_f32 v%d, v%d" % (ML + 4 * w + 2, ML + 4 * w + 2))
    O0, O1, L0, L1 = T + 8, T + 9, T + 6, T + 7
    e("v_mul_f32 v%d, v%d, v%d" % (O0, ML, W))
    e("v_mul_f32 v%d, v%d, v%d" % (O1, ML + 2, W + 1))
    e("v_mul_f32 v%d, v%d, v%d" % (L0, ML, ML + 1))
    e("v_mul_f32 v%d, v%d, v%d" % (L1, ML + 2, ML + 3))
    for w in range(1, 4):
        e("v_fmac_f32 v%d, v%d, v%d" % (O0, ML + 4 * w, W + 2 * w))
        e("v_fmac_f32 v%d, v%d, v%d" % (O1, ML + 4 * w + 2, W + 2 * w + 1))
        e("v_fmac_f32 v%d, v%d, v%d" % (L0, ML + 4 * w, ML + 4 * w + 1))
        e("v_fmac_f32 v%d, v%d, v%d" % (L1, ML + 4 * w + 2, ML + 4 * w + 3))
    e("s_lshl_b32 s%d, s%d, 5" % (sT, sHEAD))
    e("s_add_u32 s%d, s%d, s%d" % (sT, sT, sSPLIT))
    e("s_lshl_b32 s%d, s%d, 11" % (sT2, sT))
    e("buffer_store_dwordx2 v[%d:%d], v%d, s[%d:%d], s%d offen sc0 sc1" % (O0, O1, T, srdWS, srdWS + 3, sT2))
    e("s_lshl_b32 s%d, s%d, 4" % (sT3, sT))
    e("s_add_u32 s%d, s%d, 0x80000" % (sT3, sT3))
    e("v_mov_b32 v%d, v%d" % (ST + 24, M0_))
    e("v_mov_b32 v%d, v%d" % (ST + 25, L0))
    e("v_mov_b32 v%d, v%d" % (ST + 26, M1_))
    e("v_mov_b32 v%d, v%d" % (ST + 27, L1))
    e("s_cmp_lg_u32 s%d, 0" % sWAVE)
    e("s_cbranch_scc1 L_noml")
    e("s_mov_b64 exec, 1")
    e("buffer_store_dwordx4 v[%d:%d], off, s[%d:%d], s%d sc0 sc1" % (ST + 24, ST + 27, srdWS, srdWS + 3, sT3))
    e("s_mov_b64 exec, -1")
    g.lab("L_noml")
    e("s_waitcnt vmcnt(0)")
    e("s_barrier")
    srd(srdDBG, sDBG, None, 256)
    e("s_cmp_lg_u32 s%d, 0" % sWAVE)
    e("s_cbranch_scc1 L_noatom")
    e("s_lshl_b32 s%d, s%d, 5" % (sT, sHEAD))
    e("s_mov_b64 exec, 1")
    e("v_mov_b32 v%d, 1" % (T + 10))
    e("buffer_atomic_add v%d, off, s[%d:%d], s%d sc0 sc1" % (T + 10, srdDBG, srdDBG + 3, sT))
    e("s_waitcnt vmcnt(0)")
    e("v_mov_b32 v%d, 4096" % (T + 11))
    e("ds_write_b32 v%d, v%d" % (T + 11, T + 10))
    e("s_mov_b64 exec, -1")
    e("s_waitcnt lgkmcnt(0)")
    g.lab("L_noatom")
    e("s_barrier")
    e("v_mov_b32 v%d, 4096" % (T + 11))
    e("ds_read_b32 v%d, v%d" % (T + 10, T + 11))
    e("s_waitcnt lgkmcnt(0)")
    e("v_readfirstlane_b32 s%d, v%d" % (sT, T + 10))
    e("s_nop 3")
    e("s_cmp_lg_u32 s%d, 31" % sT)
    e("s_cbranch_scc1 L_end")
    e("v_and_b32 v%d, 15, v%d" % (T + 12, VLANE))
    e("v_lshlrev_b32 v%d, 4, v%d" % (T + 12, T + 12))
    e("s_lshl_b32 s%d, s%d, 9" % (sT3, sHEAD))
    e("s_add_u32 s%d, s%d, 0x80000" % (sT3, sT3))
    A_, B_ = S, S + 4
    e("buffer_load_dwordx4 v[%d:%d], v%d, s[%d:%d], s%d offen sc1" % (A_, A_ + 3, T + 12, srdWS, srdWS + 3, sT3))
    e("buffer_load_dwordx4 v[%d:%d], v%d, s[%d:%d], s%d offen offset:256 sc1" % (B_, B_ + 3, T + 12, srdWS, srdWS + 3, sT3))
    e("s_lshl_b32 s%d, s%d, 16" % (sT2, sHEAD))
    for p in range(32):
        o = " offset:2048" if (p & 1) else ""
        e("buffer_load_dwordx2 v[%d:%d], v%d, s[%d:%d], s%d offen%s sc1" % (ST + 2 * p, ST + 2 * p + 1, T, srdWS, srdWS + 3, sT2, o))
        if p & 1:
            e("s_add_u32 s%d, s%d, 4096" % (sT2, sT2))
    srd(srdOUT, sOUT, None, 8192)
    e("s_waitcnt vmcnt(32)")

    def rowred(op, v):
        for r in (8, 4, 2, 1):
            e("s_nop 1")
            e("%s_dpp v%d, v%d, v%d row_ror:%d row_mask:0xf bank_mask:0xf" % (op, v, v, v, r))

    Mx0, Mx1 = T + 4, T + 5
    e("v_max_f32 v%d, v%d, v%d" % (Mx0, A_, B_))
    e("v_max_f32 v%d, v%d, v%d" % (Mx1, A_ + 2, B_ + 2))
    rowred("v_max_f32", Mx0)
    rowred("v_max_f32", Mx1)
    for r in (A_, B_):
        e("v_sub_f32 v%d, v%d, v%d" % (r, r, Mx0))
        e("v_sub_f32 v%d, v%d, v%d" % (r + 2, r + 2, Mx1))
    for r in (A_, B_):
        e("v_exp_f32 v%d, v%d" % (r, r))
        e("v_exp_f32 v%d, v%d" % (r + 2, r + 2))
    e("s_nop 0")
    Ls0, Ls1 = T + 6, T + 7
    e("v_mul_f32 v%d, v%d, v%d" % (Ls0, A_, A_ + 1))
    e("v_mul_f32 v%d, v%d, v%d" % (Ls1, A_ + 2, A_ + 3))
    e("v_fmac_f32 v%d, v%d, v%d" % (Ls0, B_, B_ + 1))
    e("v_fmac_f32 v%d, v%d, v%d" % (Ls1, B_ + 2, B_ + 3))
    rowred("v_add_f32", Ls0)
    rowred("v_add_f32", Ls1)
    e("v_rcp_f32 v%d, v%d" % (Ls0, Ls0))
    e("v_rcp_f32 v%d, v%d" % (Ls1, Ls1))
    e("s_nop 0")
    for r in (A_, B_):
        e("v_mul_f32 v%d, v%d, v%d" % (r, r, Ls0))
        e("v_mul_f32 v%d, v%d, v%d" % (r + 2, r + 2, Ls1))
    e("v_mov_b32 v%d, 0" % O0)
    e("v_mov_b32 v%d, 0" % O1)
    e("s_nop 1")
    for p in range(32):
        e("s_waitcnt vmcnt(%d)" % (31 - p))
        r = A_ if p < 16 else B_
        e("v_fmac_f32_dpp v%d, v%d, v%d row_newbcast:%d row_mask:0xf bank_mask:0xf" % (O0, r, ST + 2 * p, p & 15))
        e("v_fmac_f32_dpp v%d, v%d, v%d row_newbcast:%d row_mask:0xf bank_mask:0xf" % (O1, r + 2, ST + 2 * p + 1, p & 15))
    e("v_cvt_pk_bf16_f32 v%d, v%d, v%d" % (O0, O0, O1))
    e("v_lshrrev_b32 v%d, 2, v%d" % (T, T))
    e("s_lshl_b32 s%d, s%d, 10" % (sT, sHEAD))
    e("buffer_store_short v%d, v%d, s[%d:%d], s%d offen" % (O0, T, srdOUT, srdOUT + 3, sT))
    e("buffer_store_short_d16_hi v%d, v%d, s[%d:%d], s%d offen offset:512" % (O0, T, srdOUT, srdOUT + 3, sT))
    g.lab("L_end")
    e("s_endpgm")

    out = HEADER
    out += "; @launch grid=(256,1,1) block=(256,1,1) lds=%d\n" % LDS
    out += '.amdgcn_target "amdgcn-amd-amdhsa--gfx950"\n.text\n.globl %s\n.p2align 8\n.type %s,@function\n%s:\n' % (KN, KN, KN)
    out += "\n".join(g.L) + "\n"
    out += """.section .rodata,"a"
.p2align 6
.amdhsa_kernel %s
  .amdhsa_next_free_vgpr %d
  .amdhsa_next_free_sgpr 96
  .amdhsa_accum_offset %d
  .amdhsa_group_segment_fixed_size 0
  .amdhsa_kernarg_size 72
  .amdhsa_user_sgpr_count 2
  .amdhsa_user_sgpr_kernarg_segment_ptr 1
  .amdhsa_system_sgpr_workgroup_id_x 1
  .amdhsa_float_denorm_mode_32 3
.end_amdhsa_kernel
""" % (KN, NV, NV)
    return out


if __name__ == "__main__":
    opt = {}
    for a in sys.argv[2:]:
        k, v = a.split("=")
        opt[k] = int(v) if v.lstrip("-").isdigit() else v
    open(sys.argv[1], "w").write(gen(opt))
```
